```python
import torch

def _softmax(x, axis=-1):
    return torch.softmax(x, dim=axis)

def _gelu(x):
    return torch.nn.functional.gelu(x, approximate='tanh')

def _silu(x):
    return torch.nn.functional.silu(x)

def _sigmoid(x):
    return torch.sigmoid(x)

def _layernorm(x, axis=-1, eps=1e-05):
    m = x.mean(dim=axis, keepdim=True)
    v = x.var(dim=axis, keepdim=True, unbiased=False)
    return (x - m) / torch.sqrt(v + eps)

def _scatter_add(tgt, idx, src, axis=0):
    return tgt.clone().index_add_(axis, idx, src)

def _segment_sum(src, seg, n):
    out = torch.zeros((n,) + src.shape[1:], dtype=src.dtype)
    return out.index_add_(0, seg, src)

def _pad(x, pw):
    flat = tuple((v for pair in reversed(pw) for v in pair))
    return torch.nn.functional.pad(x, flat)
kernel_name = 'adaLN_cond__sliding_block_cached__swiglu_ffn__decode'

def setup_inputs():

    _w = lambda a: (lambda t: t.to(torch.bfloat16) if t.is_floating_point() else t)(torch.as_tensor(a))

    def _A_setup():
        B, Sq, D = (2, 1, 448)
        Hq, Hkv, Sk, Dh = (16, 8, 32768, 256)
        assert Hq % Hkv == 0, (Hq, Hkv)
        return {'x': _w((lambda *s: torch.randn(*s, dtype=torch.bfloat16) * 0.05)(B, Sq, D)), 'k_cache': _w((lambda *s: torch.randn(*s, dtype=torch.bfloat16) * 3.2)(B, Hkv, Sk, Dh)), 'v_cache': _w((lambda *s: torch.randn(*s, dtype=torch.bfloat16) * 0.4)(B, Hkv, Sk, Dh)), 'wq': _w((lambda *s: torch.randn(*s, dtype=torch.bfloat16) * 3.2)(D, Hq * Dh) * D ** (-0.5)), 'wo': _w((lambda *s: torch.randn(*s, dtype=torch.bfloat16) * 0.4)(Hq * Dh, D) * (Hq * Dh) ** (-0.5))}
    _A_in = _A_setup()

    def _B_setup():
        B, S, D, F = (2, 1, 448, 1792)
        return {'x': _w((lambda *s: torch.randn(*s, dtype=torch.bfloat16) * 0.05)(B, S, D)), 'w_gate': _w((lambda *s: torch.randn(*s, dtype=torch.bfloat16) * 0.05)(D, F)), 'w_up': _w((lambda *s: torch.randn(*s, dtype=torch.bfloat16) * 0.05)(D, F)), 'w_down': _w((lambda *s: torch.randn(*s, dtype=torch.bfloat16) * 0.05)(F, D))}
    _B_in = _B_setup()
    return {'A_x': _A_in['x'], 'A_k_cache': _A_in['k_cache'], 'A_v_cache': _A_in['v_cache'], 'A_wq': _A_in['wq'], 'A_wo': _A_in['wo'], 'B_x': _B_in['x'], 'B_w_gate': _B_in['w_gate'], 'B_w_up': _B_in['w_up'], 'B_w_down': _B_in['w_down'], 'c': _w((lambda *s: torch.randn(*s, dtype=torch.bfloat16) * 0.1)(2, 448) * 8.0), 'w_mod': _w((lambda *s: torch.randn(*s, dtype=torch.bfloat16) * 0.1)(448, 6 * 448) * 448 ** (-0.5) * 8.0)}

def reference(A_x, A_k_cache, A_v_cache, A_wq, A_wo, B_x, B_w_gate, B_w_up, B_w_down, c, w_mod):

    def _A_ref(x, k_cache, v_cache, wq, wo):
        B, Sq, D = x.shape
        Hq, Dh = (16, 256)
        Hkv, Sk = (k_cache.shape[1], k_cache.shape[2])
        W = min(4096, max(256, Sk // 4))
        rep = Hq // Hkv
        q = (lambda x, *d: x.permute(*d))((x @ wq).reshape(B, Sq, Hq, Dh), 0, 2, 1, 3)
        k = (lambda x, n, axis: torch.repeat_interleave(x, n, dim=axis))(k_cache[:, :, Sk - W:, :], rep, axis=1)
        v = (lambda x, n, axis: torch.repeat_interleave(x, n, dim=axis))(v_cache[:, :, Sk - W:, :], rep, axis=1)
        scores = torch.einsum('bhqd,bhkd->bhqk', q, k) * Dh ** (-0.5)
        p = _softmax(scores, axis=-1)
        o = torch.einsum('bhqk,bhkd->bhqd', p, v)
        return (lambda x, *d: x.permute(*d))(o, 0, 2, 1, 3).reshape(B, Sq, Hq * Dh) @ wo

    def _B_ref(x, w_gate, w_up, w_down):
        g = _silu(x @ w_gate)
        u = x @ w_up
        return g * u @ w_down
    x = A_x
    mod = (_silu(c) @ w_mod).reshape(c.shape[0], 6, 1, -1)
    sa, ca, ga, sb, cb, gb = (mod[:, 0].clone(), mod[:, 1].clone(), mod[:, 2].clone(), mod[:, 3].clone(), mod[:, 4].clone(), mod[:, 5].clone())
    h = _layernorm(x, axis=-1) * (1 + ca) + sa
    x = x + ga * _A_ref(h, A_k_cache, A_v_cache, A_wq, A_wo)
    h = _layernorm(x, axis=-1) * (1 + cb) + sb
    x = x + gb * _B_ref(h, B_w_gate, B_w_up, B_w_down)
    return x
```

```python
import re

TRANS = ('v_exp_', 'v_log_', 'v_rcp_', 'v_rsq_', 'v_sqrt_', 'v_sin_', 'v_cos_')

def regs_of(op):
    op = op.strip()
    op = re.sub(r'^-', '', op)
    m = re.match(r'^abs\((.*)\)$', op) or re.match(r'^\|(.*)\|$', op)
    if m: op = m.group(1)
    m = re.match(r'^([vsa])(\d+)$', op)
    if m: return [(m.group(1), int(m.group(2)))]
    m = re.match(r'^([vsa])\[(\d+):(\d+)\]$', op)
    if m: return [(m.group(1), i) for i in range(int(m.group(2)), int(m.group(3)) + 1)]
    if op == 'vcc': return [('s', 'vcc')]
    if op in ('vcc_lo', 'vcc_hi'): return [('s', 'vcc')]
    if op == 'exec': return [('s', 'exec')]
    if op == 'm0': return [('s', 'm0')]
    return []

class Ins:
    def __init__(self, text):
        self.text = text
        t = text.split(';')[0].strip()
        self.label = t[:-1] if t.endswith(':') else None
        self.directive = t.startswith('.') or t == ''
        self.mn = None
        if self.label or self.directive: return
        parts = t.split(None, 1)
        self.mn = mn = parts[0]
        rest = parts[1] if len(parts) > 1 else ''
        ops, depth, cur = [], 0, ''
        for ch in rest:
            if ch in '[(': depth += 1
            if ch in '])': depth -= 1
            if ch == ',' and depth == 0: ops.append(cur.strip()); cur = ''
            else: cur += ch
        if cur.strip(): ops.append(cur.strip())
        mods = ''
        if ops:
            last = ops[-1].split(None, 1)
            ops[-1] = last[0]
            mods = last[1] if len(last) > 1 else ''
        self.ops, self.mods = ops, mods
        self.mfma = mn.startswith('v_mfma')
        self.valu = mn.startswith('v_') and not self.mfma
        self.vmem = mn.startswith(('buffer_', 'global_'))
        self.ds = mn.startswith('ds_')
        self.salu = mn.startswith('s_')
        self.dpp = '_dpp' in mn
        self.trans = mn.startswith(TRANS)
        self.permlane = mn.startswith('v_permlane')
        self.lds_dma = self.vmem and (' lds' in ' ' + mods or '_lds_' in mn)
        R = [regs_of(o) for o in ops]
        w, r = [], []
        flat = lambda L: [x for l in L for x in l]
        if self.mfma:
            w = R[0]; r = flat(R[1:]); self.A, self.B, self.C = R[1], R[2], R[3]
            self.passes = 4 if '16x16x32' in mn else 8
            if mn.endswith('16x16x4_f32'): self.passes = 8
        elif self.valu:
            if self.permlane: w = flat(R); r = flat(R)
            elif mn.startswith(('v_add_co', 'v_sub_co', 'v_addc_co', 'v_subb_co')):
                w = R[0] + R[1]; r = flat(R[2:])
            else:
                w = R[0]; r = flat(R[1:])
                if mn.startswith(('v_fmac', 'v_dot2c', 'v_writelane')) or self.dpp: r = r + R[0]
        elif self.vmem:
            if 'load' in mn and not self.lds_dma: w = R[0]; r = flat(R[1:])
            else: r = flat(R)
            if self.lds_dma: r = r + [('s', 'm0')]
        elif self.ds:
            if mn.startswith(('ds_read', 'ds_bpermute', 'ds_permute', 'ds_swizzle')) or '_rtn' in mn:
                w = R[0]; r = flat(R[1:])
            else: r = flat(R)
        elif self.salu:
            if mn.startswith(('s_cmp', 's_cbranch', 's_branch', 's_waitcnt', 's_nop', 's_barrier', 's_endpgm', 's_setprio', 's_sleep', 's_bitcmp')):
                r = flat(R)
            else:
                w = R[0] if R else []; r = flat(R[1:])
                if 'saveexec' in mn: w = w + [('s', 'exec')]
        self.w, self.r = set(w), set(r)
        self.wide_store = self.vmem and ('store' in mn) and ('x4' in mn or 'x3' in mn)
        if self.wide_store:
            self.sdata = set(R[0] if mn.startswith('buffer') else R[1])
    def states(self):
        if self.mn == 's_nop': return int(self.ops[0]) + 1
        return 1

def need(p, c):
    n = 0
    vw = {x for x in p.w if x[0] in 'va'}
    sw = {x for x in p.w if x[0] == 's'}
    if p.valu:
        if c.mfma and vw & c.r: n = max(n, 2)
        if c.valu and c.dpp and vw & set(regs_of(c.ops[1])): n = max(n, 2)
        if c.permlane and vw & c.r: n = max(n, 2)
        if c.mn in ('v_readfirstlane_b32', 'v_readlane_b32') and vw & c.r: n = max(n, 1)
        if p.trans and c.valu and vw & c.r: n = max(n, 1)
        if p.trans and (c.vmem or c.ds) and vw & c.r: n = max(n, 1)
        if 'sdwa' in p.mn and c.valu and vw & (c.r | c.w): n = max(n, 1)
        if sw:
            if c.valu and sw & c.r:
                n = max(n, 4 if c.mn in ('v_readlane_b32', 'v_writelane_b32') else 2)
            if c.vmem and sw & c.r: n = max(n, 5)
            if c.salu and sw & c.r and not c.mn.startswith('s_cbranch'): n = max(n, 1)
    if p.mfma:
        P = p.passes
        big = {4: 8, 8: 12}[P]; ovl = {4: 6, 8: 10}[P]; war = {4: 3, 8: 7}[P]
        if c.mfma:
            if vw & (set(c.A) | set(c.B)): n = max(n, big)
            if vw & set(c.C) and not (set(c.C) == vw and c.passes == P): n = max(n, ovl)
            if vw & c.w and not (vw & set(c.C)): n = max(n, big)
        elif (c.valu or c.vmem or c.ds) and vw & (c.r | c.w): n = max(n, big)
        if c.valu and set(p.C) & c.w: n = max(n, war)
    if p.salu and ('s', 'm0') in p.w and c.lds_dma: n = max(n, 1)
    if p.vmem and p.wide_store and (c.valu or c.mfma or c.vmem or c.ds) and p.sdata & c.w: n = max(n, 2)
    return n

def fix_hazards(lines, verbose=False):
    ins = [Ins(l) for l in lines]
    out = []
    def deficit(hist, c):
        d, worst = 0, 0
        for p in reversed(hist):
            if p.mn is None: continue
            if d >= 20: break
            worst = max(worst, need(p, c) - d)
            d += p.states()
        return worst
    nops = 0
    for c in ins:
        if c.mn is not None:
            hist = []
            for p in reversed(out):
                if p.mn in ('s_branch', 's_endpgm'): break
                hist.append(p)
                if len(hist) > 40: break
            hist.reverse()
            k = deficit(hist, c)
            if k > 0:
                out.append(Ins(f'    s_nop {k-1}')); nops += k
        out.append(c)
    pos = {x.label: i for i, x in enumerate(out) if x.label}
    for i, x in enumerate(out):
        if x.mn and x.mn.startswith(('s_cbranch', 's_branch')):
            tgt = pos[x.ops[0]]
            hist = []
            for p in reversed(out[:i]):
                if p.mn in ('s_branch', 's_endpgm'): break
                hist.append(p)
                if len(hist) > 40: break
            hist.reverse(); hist.append(x)
            for c in out[tgt:tgt + 30]:
                if c.mn is None: continue
                k = deficit(hist, c)
                assert k <= 0, f'hazard across branch {x.text} -> {c.text} needs {k}'
                if c.mn in ('s_branch', 's_endpgm'): break
                hist.append(c)
    if verbose: print('inserted wait states:', nops)
    return [x.text for x in out]
```

```python
import sys, os, struct
sys.path.insert(0, os.path.dirname(os.path.abspath(__file__)))
from asmlib import fix_hazards

KNAME = 'adaLN_cond__sliding_block_cached__swiglu_ffn__decode_kernel'
HEADER = open(os.path.join(os.path.dirname(os.path.abspath(__file__)), 'header.txt')).read()

WS_MOD, WS_Q, WS_ML, WS_H1, WS_H2, WS_H3, WS_STAMP = 0x1000, 0x8000, 0x10000, 0x20000, 0x60000, 0x70000, 0xC0000
WS_SIZE = 0x100000
OOB = 0x40000000
L_SLAB = 0
L_XB = 86016
XS = 1088
L_P = L_XB + 2304
L_M = L_P + 2048
L_FLAG = L_M + 64
L_ZERO = L_FLAG + 64
L_GB = L_ZERO + 64
L_ST = L_GB + 128
L_DUMMY = L_ST + 64
L_RED = L_DUMMY + 64
L_X2 = L_RED + 8192
L_END = L_X2 + 3584
LDS_BYTES = (L_END + 255) // 256 * 256

def f2u(x): return struct.unpack('<I', struct.pack('<f', x))[0]
C_SM = f2u(1.4426950408889634 / 16.0)
C_LOG2E = f2u(1.4426950408889634)
C_EPS = f2u(1e-5)

sX, sK, sV, sWQ, sWO, sWG, sWU, sWD, sC, sWM, sOUT, sWS = 4, 6, 8, 10, 12, 16, 18, 20, 22, 24, 26, 28
sWAVE, sW, sHKV, sIDX, sB, sSPLIT, sJOB, sTAG, sTO = 30, 31, 32, 33, 34, 35, 37, 38, 39
KV, WSR, SA, SB_, SC_ = 40, 44, 48, 52, 56
T0, T1, T2, T3, T4, T5 = 60, 61, 62, 63, 64, 65
M56 = 66
MT = 68
ST0 = 72

DPPM = 'row_mask:0xf bank_mask:0xf'

class G:
    def __init__(self, diag=False, **opt):
        self.L = []; self.diag = diag; self.opt = opt; self.uid = 0
    def A(self, s):
        for l in s.split('\n'):
            l = l.strip()
            if not l: continue
            self.L.append(l if l.endswith(':') or l.startswith('.') else '    ' + l)
    def lab(self, p):
        self.uid += 1; return f'L_{p}_{self.uid}'
    def stamp(self, i):
        if self.diag:
            self.A(f's_memrealtime s[70:71]\ns_waitcnt lgkmcnt(0)\ns_mov_b32 s{ST0+i}, s70')
    def srd(self, d, p, nbytes):
        self.A(f's_mov_b32 s{d}, s{p}\ns_mov_b32 s{d+1}, s{p+1}\ns_mov_b32 s{d+2}, {nbytes:#x}\ns_mov_b32 s{d+3}, 0x20000')
    def poll_head(self, name):
        l = self.lab(name)
        self.A(f'{l}:\ns_sub_u32 s{sTO}, s{sTO}, 1\ns_cbranch_scc1 L_end')
        return l
    def tagcheck(self, regs, a, b, mask=None):
        A = self.A
        for op, d in (('min', a), ('max', b)):
            r = list(regs)
            if len(r) == 1: A(f'v_mov_b32 v{d}, v{r[0]}'); continue
            if len(r) == 2: A(f'v_{op}_u32 v{d}, v{r[0]}, v{r[1]}'); continue
            A(f'v_{op}3_u32 v{d}, v{r[0]}, v{r[1]}, v{r[2]}'); r = r[3:]
            while len(r) >= 2:
                A(f'v_{op}3_u32 v{d}, v{d}, v{r[0]}, v{r[1]}'); r = r[2:]
            if r: A(f'v_{op}_u32 v{d}, v{d}, v{r[0]}')
        A(f'v_cmp_ne_u32 vcc, s{sTAG}, v{a}\nv_cmp_ne_u32 s[{MT}:{MT+1}], s{sTAG}, v{b}')
        A(f's_or_b64 vcc, vcc, s[{MT}:{MT+1}]')
        if mask is not None: A(f's_and_b64 vcc, vcc, s[{mask}:{mask+1}]')
    def subbar(self, phase, t):
        A = self.A
        A(f'v_mov_b32 v{t+4}, {L_FLAG}\nv_lshl_add_u32 v{t}, s{sW}, 2, v{t+4}\nv_mov_b32 v{t+5}, {phase}')
        A(f'ds_write_b32 v{t}, v{t+5}')
        l = self.poll_head('sb')
        A(f'ds_read_b128 v[{t}:{t+3}], v{t+4}\ns_waitcnt lgkmcnt(0)')
        A(f'v_min3_u32 v{t}, v{t}, v{t+1}, v{t+2}\nv_min_u32 v{t}, v{t}, v{t+3}')
        A(f'v_cmp_gt_u32 vcc, {phase}, v{t}\ns_cbranch_vccnz {l}')
    def xaddr(self, d, k4, t):
        A = self.A
        A(f'v_lshrrev_b32 v{d}, 3, v{k4}\nv_lshlrev_b32 v{d}, 6, v{d}')
        A(f'v_and_b32 v{t}, 3, v{k4}\nv_lshl_add_u32 v{d}, v{t}, 4, v{d}')
        A(f'v_bfe_u32 v{t}, v{k4}, 2, 1\nv_lshl_add_u32 v{d}, v{t}, 3, v{d}')
    def xfrag_addr(self, d, t, base):
        A = self.A
        A(f'v_and_b32 v{t}, 1, v0\nv_mul_u32_u24 v{d}, {XS}, v{t}\nv_lshrrev_b32 v{t}, 4, v0')
        A(f'v_lshl_add_u32 v{d}, v{t}, 4, v{d}\nv_add_u32 v{d}, {base}, v{d}')
    def unpack(self, d0, d1, s):
        if d0 == s: self.A(f'v_and_b32 v{d1}, 0xffff0000, v{s}\nv_lshlrev_b32 v{d0}, 16, v{s}')
        else: self.A(f'v_lshlrev_b32 v{d0}, 16, v{s}\nv_and_b32 v{d1}, 0xffff0000, v{s}')
    def rnd2(self, a, b, t):
        self.A(f'v_cvt_pk_bf16_f32 v{t}, v{a}, v{b}'); self.unpack(a, b, t)
    def allred_rows(self, op, x, t):
        A = self.A
        A(f'v_mov_b32 v{t}, v{x}\nv_permlane16_swap_b32 v{x}, v{t}\nv_{op}_f32 v{x}, v{x}, v{t}')
        A(f'v_mov_b32 v{t}, v{x}\nv_permlane32_swap_b32 v{x}, v{t}\nv_{op}_f32 v{x}, v{x}, v{t}')
    def allred_wave(self, op, xs, ts):
        A = self.A
        for sh in (8, 4, 2, 1):
            for x in xs: A(f'v_{op}_f32_dpp v{x}, v{x}, v{x} row_ror:{sh} {DPPM}')
        for sw in (16, 32):
            for x, t in zip(xs, ts): A(f'v_mov_b32 v{t}, v{x}')
            for x, t in zip(xs, ts): A(f'v_permlane{sw}_swap_b32 v{x}, v{t}')
            for x, t in zip(xs, ts): A(f'v_{op}_f32 v{x}, v{x}, v{t}')
    def kv_loads(self, voff):
        A = self.A
        A(f's_and_b32 s{T2}, s2, 15\ns_lshl_b32 s{T0}, s{T2}, 24\ns_lshl_b32 s{T3}, s{sW}, 11\ns_add_u32 s{T0}, s{T0}, s{T3}')
        A(f's_add_u32 s{T0}, s{T0}, {28672*512}')
        A(f's_add_u32 s{T1}, s{sSPLIT}, s{T2}\ns_lshl_b32 s{T1}, s{T1}, 13\ns_and_b32 s{T1}, s{T1}, 0x1ffff')
        for t in range(16):
            A(f's_add_u32 s{T2}, s{T0}, s{T1}')
            for j in range(2):
                r = 128 + 8 * t + 4 * j
                A(f'buffer_load_dwordx4 v[{r}:{r+3}], v{voff}, s[{KV}:{KV+3}], s{T2} offen offset:{256*j} nt')
            if t < 15:
                A(f's_add_u32 s{T1}, s{T1}, 0x2000\ns_and_b32 s{T1}, s{T1}, 0x1ffff\ns_add_u32 s{T0}, s{T0}, 0x20000')
    def dma(self, voff, srd, n, sbase, sstep, ldsbase):
        A = self.A
        for i in range(n):
            A(f's_mov_b32 m0, s{ldsbase}')
            A(f'buffer_load_dwordx4 v{voff}, s[{srd}:{srd+3}], s{sbase} offen nt lds')
            if i < n - 1: A(f's_add_u32 s{ldsbase}, s{ldsbase}, 1024\ns_add_u32 s{sbase}, s{sbase}, {sstep}')
    def slab64_dma(self, srd, stride, n, voff, t):
        A = self.A
        A(f'v_lshrrev_b32 v{voff}, 3, v0\nv_mul_u32_u24 v{voff}, {stride}, v{voff}')
        A(f'v_lshrrev_b32 v{t}, 4, v0\nv_lshlrev_b32 v{t}, 1, v{t}\nv_xor_b32 v{t}, v{t}, v0\nv_and_b32 v{t}, 7, v{t}')
        A(f'v_lshl_add_u32 v{voff}, v{t}, 4, v{voff}')
        A(f's_mul_i32 s{T1}, s{sW}, {n*8*stride}\ns_add_u32 s{T0}, s{T0}, s{T1}\ns_mul_i32 s{T1}, s{sW}, {n*1024}')
        self.dma(voff, srd, n, T0, 8 * stride, T1)
    def slab64_traddr(self, d, t, u):
        A = self.A
        A(f'v_lshrrev_b32 v{t}, 2, v0')
        A(f'v_lshlrev_b32 v{d}, 7, v{t}')
        A(f'v_and_b32 v{t}, 6, v{t}')
        A(f's_lshl_b32 s{T0}, s{sW}, 1\nv_xor_b32 v{t}, s{T0}, v{t}')
        A(f'v_lshlrev_b32 v{t}, 4, v{t}\nv_and_b32 v{u}, 3, v0\nv_lshl_add_u32 v{t}, v{u}, 3, v{t}\nv_add_u32 v{d}, v{d}, v{t}')
    def role(self):
        pass

def role_dispatch(g, lM, lQ, lO, lF, lN):
    A = g.A
    A(f's_cmp_lt_u32 s{sIDX}, 2')
    l1 = g.lab('r'); A(f's_cbranch_scc0 {l1}')
    A(f's_lshl_b32 s{sJOB}, s{sHKV}, 1\ns_cmp_eq_u32 s{sHKV}, 7\ns_cselect_b32 s{sJOB}, 28, s{sJOB}\ns_add_u32 s{sJOB}, s{sJOB}, s{sIDX}\ns_branch {lM}')
    A(f'{l1}:')
    A(f's_lshl_b32 s{sJOB}, s{sHKV}, 3\ns_add_u32 s{sJOB}, s{sJOB}, s{sIDX}\ns_sub_u32 s{sJOB}, s{sJOB}, 2')
    A(f's_cmp_lt_u32 s{sIDX}, 10\ns_cbranch_scc1 {lQ}')
    A(f's_sub_u32 s{sJOB}, s{sIDX}, 10\ns_cmp_lt_u32 s{sIDX}, 17\ns_cbranch_scc1 {lO}')
    l7 = g.lab('r'); A(f's_cmp_eq_u32 s{sHKV}, 7\ns_cbranch_scc1 {l7}')
    A(f's_lshl_b32 s{sJOB}, s{sHKV}, 3\ns_add_u32 s{sJOB}, s{sJOB}, s{sIDX}\ns_sub_u32 s{sJOB}, s{sJOB}, 17')
    A(f's_cmp_lt_u32 s{sIDX}, 25\ns_cbranch_scc1 {lF}')
    A(f's_lshl_b32 s{sJOB}, s{sHKV}, 1\ns_add_u32 s{sJOB}, s{sJOB}, s{sIDX}\ns_sub_u32 s{sJOB}, s{sJOB}, 11')
    A(f's_cmp_lt_u32 s{sIDX}, 27\ns_cbranch_scc1 {lM}\ns_branch {lN}')
    A(f'{l7}:\ns_add_u32 s{sJOB}, s{sIDX}, 13\ns_cmp_lt_u32 s{sIDX}, 29\ns_cbranch_scc1 {lM}\ns_branch {lN}')

def mk_tag(g):
    g.A(f's_waitcnt lgkmcnt(0)\ns_mul_i32 s{sTAG}, s{sTAG}, 0x9e3779b1\ns_add_u32 s{sTAG}, s{sTAG}, 0x7f4a7c15')

def build(diag=False, **opt):
    g = G(diag, **opt); A = g.A
    A(f's_cmp_ge_u32 s2, 256\ns_cbranch_scc1 L_exit')
    if diag:
        for i in range(16): A(f's_mov_b32 s{ST0+i}, 0')
    g.stamp(0)
    A('s_load_dwordx16 s[4:19], s[0:1], 0\ns_load_dwordx8 s[20:27], s[0:1], 64\ns_load_dwordx2 s[28:29], s[0:1], 104')
    A(f'v_lshrrev_b32 v1, 6, v0\nv_and_b32 v0, 63, v0\nv_readfirstlane_b32 s{sWAVE}, v1')
    A(f'v_and_b32 v2, 31, v0\nv_lshlrev_b32 v2, 2, v2\nv_mov_b32 v3, 0\nv_add_u32 v2, {L_FLAG}, v2\nds_write_b32 v2, v3')
    A(f's_and_b32 s{sW}, s{sWAVE}, 3\ns_and_b32 s{sHKV}, s2, 7\ns_lshr_b32 s{sIDX}, s2, 3\ns_and_b32 s{sB}, s{sIDX}, 1\ns_lshr_b32 s{sSPLIT}, s2, 4')
    A(f's_mov_b32 s{sTO}, 200000\ns_mov_b32 s{M56}, -1\ns_mov_b32 s{M56+1}, 0x00ffffff')
    A('s_waitcnt lgkmcnt(0)\ns_barrier')
    A(f's_load_dword s{sTAG}, s[{sWS}:{sWS+1}], 0')
    g.srd(WSR, sWS, WS_SIZE)
    A(f's_cmp_ge_u32 s{sWAVE}, 4\ns_cbranch_scc1 L_vwave')

    g.srd(KV, sK, 0x10000000)
    A('v_lshrrev_b32 v4, 4, v0\nv_and_b32 v5, 3, v0\nv_bfe_u32 v6, v0, 2, 2')
    A('v_lshlrev_b32 v1, 9, v6\nv_lshl_add_u32 v1, v4, 6, v1\nv_lshl_add_u32 v1, v5, 4, v1')
    g.kv_loads(1)
    g.stamp(1)
    A('v_bfe_u32 v6, v0, 3, 1')
    A('v_lshlrev_b32 v2, 10, v6\nv_lshl_add_u32 v2, v4, 7, v2\nv_lshl_add_u32 v2, v5, 5, v2')
    A(f's_lshl_b32 s{T4}, s{sB}, 4\ns_lshl_b32 s{T0}, s{sHKV}, 1\ns_add_u32 s{T4}, s{T4}, s{T0}\ns_lshl_b32 s{T4}, s{T4}, 10')
    A(f's_add_u32 s{T0}, s{T4}, {WS_Q}')
    mk_tag(g)
    l = g.poll_head('q')
    for i, off in enumerate((0, 16, 512, 528)):
        A(f'buffer_load_dwordx4 v[{16+4*i}:{19+4*i}], v2, s[{WSR}:{WSR+3}], s{T0} offen offset:{off} sc1')
    A('s_waitcnt vmcnt(0)')
    g.tagcheck(range(17, 32, 2), 8, 9)
    A(f's_cbranch_vccnz {l}')
    g.stamp(2)
    for i in range(8): A(f'v_mov_b32 v{8+i}, v{16+2*i}')
    def qk_extract(t):
        a = 32 + 4 * t; s = 96 + t
        A(f'v_mov_b32_dpp v{s}, v{a} quad_perm:[0,0,0,0] {DPPM}')
        for r in (1, 2, 3): A(f'v_add_f32_dpp v{s}, v{a+r}, v{s} quad_perm:[{r},{r},{r},{r}] {DPPM}')
    for t in range(16):
        a = 32 + 4 * t; k = 128 + 8 * t
        A(f'v_mfma_f32_16x16x32_bf16 v[{a}:{a+3}], v[{k}:{k+3}], v[8:11], 0')
        A(f'v_mfma_f32_16x16x32_bf16 v[{a}:{a+3}], v[{k+4}:{k+7}], v[12:15], v[{a}:{a+3}]')
        if t >= 2: qk_extract(t - 2)
    qk_extract(14); qk_extract(15)
    for t in range(0, 16, 2): g.rnd2(96 + t, 97 + t, 16 + t // 2)
    A('v_max3_f32 v16, v96, v97, v98')
    for t in range(99, 111, 2): A(f'v_max3_f32 v16, v16, v{t}, v{t+1}')
    A('v_max_f32 v16, v16, v111')
    g.allred_rows('max', 16, 17)
    A(f's_mov_b32 s{T1}, {C_SM:#x}')
    for t in range(16): A(f'v_sub_f32 v{96+t}, v{96+t}, v16')
    for t in range(16): A(f'v_mul_f32 v{96+t}, s{T1}, v{96+t}')
    for t in range(16): A(f'v_exp_f32 v{96+t}, v{96+t}')
    A(f'v_lshl_add_u32 v3, v6, 2, v4\nv_lshlrev_b32 v3, 6, v3\ns_lshl_b32 s{T0}, s{sW}, 9\ns_add_u32 s{T0}, s{T0}, {L_P}\nv_add_u32 v3, s{T0}, v3')
    for i in range(4): A(f'ds_write_b128 v3, v[{96+4*i}:{99+4*i}] offset:{16*i}')
    A(f's_lshl_b32 s{T0}, s{sW}, 2\ns_add_u32 s{T0}, s{T0}, {L_M}\nv_lshlrev_b32 v3, 4, v6\nv_add_u32 v3, s{T0}, v3\nds_write_b32 v3, v16')
    A('v_add_f32 v18, v96, v97')
    for t in range(98, 112): A(f'v_add_f32 v18, v18, v{t}')
    g.allred_rows('add', 18, 17)
    A(f'v_mov_b32 v17, s{sTAG}\nv_mov_b32 v19, s{sTAG}')
    A(f'v_and_b32 v3, 0x37, v0\nv_cmp_eq_u32 vcc, 0, v3\nv_lshlrev_b32 v3, 10, v6\nv_mov_b32 v7, {OOB:#x}\nv_cndmask_b32 v3, v7, v3, vcc')
    A(f's_lshl_b32 s{T0}, s{sSPLIT}, 2\ns_add_u32 s{T0}, s{T0}, s{sW}\ns_lshl_b32 s{T0}, s{T0}, 4\ns_add_u32 s{T0}, s{T0}, s{T4}\ns_add_u32 s{T0}, s{T0}, {WS_ML}')
    A(f'buffer_store_dwordx4 v[16:19], v3, s[{WSR}:{WSR+3}], s{T0} offen sc1')
    g.stamp(3)
    A('s_waitcnt lgkmcnt(0)\ns_barrier')
    g.stamp(4)
    role_dispatch(g, 'L_end', 'L_end', 'L_ojob', 'L_fjob', 'L_end')

    A('L_ojob:')
    g.slab64_traddr(1, 2, 3)
    for t in range(16):
        for a in range(2):
            r = 128 + 4 * t + 2 * a
            A(f'ds_read_b64_tr_b16 v[{r}:{r+1}], v1 offset:{t*4096+a*2048}')
        if t % 4 == 3: A('s_waitcnt lgkmcnt(0)')
    A(f's_lshr_b32 s{T2}, s{sW}, 1\ns_and_b32 s{T3}, s{sW}, 1')
    A(f's_lshl_b32 s{T0}, s{T2}, 4\ns_lshl_b32 s{T1}, s{sHKV}, 1\ns_add_u32 s{T0}, s{T0}, s{T1}\ns_add_u32 s{T0}, s{T0}, s{T3}\ns_lshl_b32 s{T0}, s{T0}, 10\ns_add_u32 s{T0}, s{T0}, {WS_ML}')
    A('v_lshlrev_b32 v1, 4, v0')
    l = g.poll_head('ml')
    A(f'buffer_load_dwordx4 v[16:19], v1, s[{WSR}:{WSR+3}], s{T0} offen sc1\ns_waitcnt vmcnt(0)')
    g.tagcheck((17, 19), 8, 9)
    A(f's_cbranch_vccnz {l}')
    g.stamp(5)
    A(f'v_max_f32_dpp v20, v16, v16 quad_perm:[1,0,3,2] {DPPM}\nv_max_f32_dpp v20, v20, v20 quad_perm:[2,3,0,1] {DPPM}')
    A('v_mov_b32 v21, v20')
    g.allred_wave('max', [21], [22])
    A(f's_mov_b32 s{T1}, {C_SM:#x}')
    A(f'v_sub_f32 v16, v16, v21\nv_sub_f32 v20, v20, v21\nv_mul_f32 v16, s{T1}, v16\nv_mul_f32 v20, s{T1}, v20\nv_exp_f32 v16, v16\nv_exp_f32 v20, v20')
    A('v_mul_f32 v18, v18, v16')
    g.allred_wave('add', [18], [22])
    A('v_rcp_f32 v18, v18\nv_mul_f32 v20, v20, v18')
    A('v_cvt_pk_bf16_f32 v21, v20, v20\nv_and_b32 v22, 0xffff0000, v21\nv_sub_f32 v22, v20, v22\nv_cvt_pk_bf16_f32 v22, v22, v22')
    mk_masks(g, 8, 2, 3)
    A('v_lshrrev_b32 v4, 4, v0\nv_lshlrev_b32 v2, 4, v4\nv_and_b32 v3, 8, v0\nv_cmp_ne_u32 vcc, 0, v3')
    for t in range(4):
        A(f'ds_bpermute_b32 v{24+2*t}, v2, v21 offset:{64*t}\nds_bpermute_b32 v{25+2*t}, v2, v22 offset:{64*t}')
    A('s_waitcnt lgkmcnt(0)')
    for t in range(4):
        A(f'v_cndmask_b32 v{24+2*t}, v{24+2*t}, v{25+2*t}, vcc')
        for r in range(4): A(f'v_and_b32 v{32+4*t+r}, v{24+2*t}, v{8+r}')
    A('v_and_b32 v5, 15, v0\nv_lshlrev_b32 v1, 10, v4\nv_lshl_add_u32 v1, v5, 4, v1')
    A(f's_lshl_b32 s{T0}, s{sHKV}, 15\ns_lshl_b32 s{T1}, s{T2}, 14\ns_add_u32 s{T0}, s{T0}, s{T1}\ns_lshl_b32 s{T1}, s{T3}, 9\ns_add_u32 s{T0}, s{T0}, s{T1}\ns_add_u32 s{T0}, s{T0}, {WS_H1}')
    A(f'v_add_u32 v1, s{T0}, v1')
    A(f'v_lshrrev_b32 v6, 1, v4\nv_lshlrev_b32 v6, 5, v6\nv_lshl_add_u32 v6, v5, 1, v6\nv_and_b32 v7, 1, v4\nv_add_u32 v6, v6, v7\ns_lshl_b32 s{T1}, s{T3}, 6\nv_add_u32 v6, s{T1}, v6')
    g.xaddr(2, 6, 7)
    A(f's_mul_i32 s{T1}, s{T2}, {XS}\ns_add_u32 s{T1}, s{T1}, {L_XB}\nv_add_u32 v2, s{T1}, v2')
    g.xfrag_addr(3, 7, L_XB)
    A(f'v_mul_u32_u24 v6, 1792, v5\nv_lshl_add_u32 v6, v4, 4, v6\nv_cmp_gt_u32 vcc, 2, v5\nv_mov_b32 v7, {OOB:#x}\nv_cndmask_b32 v6, v7, v6, vcc')
    A(f's_mul_i32 s{T5}, s{sHKV}, 3584\ns_lshl_b32 s{T1}, s{sJOB}, 8\ns_add_u32 s{T5}, s{T5}, s{T1}\ns_lshl_b32 s{T1}, s{sW}, 6\ns_add_u32 s{T5}, s{T5}, s{T1}\ns_add_u32 s{T5}, s{T5}, {WS_H2}')
    A(f's_movk_i32 s{T1}, 0x1000\ns_movk_i32 s{T2}, 0x2000\ns_movk_i32 s{T3}, 0x3000')
    g.stamp(6)
    A('s_barrier')
    g.stamp(7)
    l = g.poll_head('h1')
    for t in range(4):
        for hf in range(2):
            r = 64 + 8 * t + 4 * hf
            so = '0' if t == 0 else f's{T0+t}'
            A(f'buffer_load_dwordx4 v[{r}:{r+3}], v1, s[{WSR}:{WSR+3}], {so} offen offset:{256*hf} sc1')
    for t in range(4):
        for hf in range(2):
            r = 64 + 8 * t + 4 * hf; a = 48 + 4 * hf
            A(f's_waitcnt vmcnt({7-2*t-hf})')
            c = '0' if t == 0 else f'v[{a}:{a+3}]'
            A(f'v_mfma_f32_16x16x32_bf16 v[{a}:{a+3}], v[{32+4*t}:{35+4*t}], v[{r}:{r+3}], {c}')
    for r in range(4): A(f'v_permlane32_swap_b32 v{48+r}, v{52+r}')
    A('v_pk_add_f32 v[48:49], v[48:49], v[52:53]\nv_pk_add_f32 v[50:51], v[50:51], v[54:55]')
    slow = g.lab('h1slow'); ok = g.lab('h1ok')
    A(f'v_cmp_u_f32 vcc, v48, v48\nv_cvt_pk_bf16_f32 v52, v48, v49\nv_cvt_pk_bf16_f32 v53, v50, v51\ns_cbranch_vccnz {slow}\n{ok}:')
    g.slow_paths = [(slow, ok, l, list(range(64, 96)))]
    g.stamp(8)
    A('ds_write_b64 v2, v[52:53]\ns_waitcnt lgkmcnt(0)\ns_barrier')
    for t in range(16): A(f'ds_read_b128 v[{64+4*t}:{67+4*t}], v3 offset:{64*t}')
    for t in range(16):
        A(f's_waitcnt lgkmcnt({min(15, 15-t)})')
        c = '0' if t == 0 else 'v[48:51]'
        A(f'v_mfma_f32_16x16x32_bf16 v[48:51], v[{128+4*t}:{131+4*t}], v[{64+4*t}:{67+4*t}], {c}')
    for r in range(4): A(f'v_min_u32 v{48+r}, -2, v{48+r}')
    A(f'buffer_store_dwordx4 v[48:51], v6, s[{WSR}:{WSR+3}], s{T5} offen sc1')
    g.stamp(9)
    A('s_branch L_end')

    A('L_fjob:')
    A('v_lshrrev_b32 v2, 2, v0\nv_lshlrev_b32 v1, 6, v2\nv_bfe_u32 v2, v0, 4, 1\nv_and_b32 v3, 2, v0\nv_or_b32 v2, v2, v3')
    A(f'v_xor_b32 v2, s{sW}, v2\nv_lshl_add_u32 v1, v2, 4, v1\nv_mul_u32_u24 v3, {28672//2}, v3\nv_add_u32 v1, v1, v3\nv_and_b32 v3, 1, v0\nv_lshl_add_u32 v1, v3, 3, v1')
    for t in range(14):
        for a in range(2):
            r = 128 + 4 * t + 2 * a
            A(f'ds_read_b64_tr_b16 v[{r}:{r+1}], v1 offset:{t*2048+a*1024}')
        if t % 4 == 3: A('s_waitcnt lgkmcnt(0)')
    A(f'v_lshrrev_b32 v2, 2, v0\nv_mul_u32_u24 v1, 896, v2\nv_and_b32 v3, 3, v0\nv_lshl_add_u32 v1, v3, 3, v1\ns_mul_i32 s{T0}, s{sW}, 224\ns_add_u32 s{T0}, s{T0}, {2*28672}\nv_add_u32 v1, s{T0}, v1')
    A('s_waitcnt lgkmcnt(0)')
    for j in range(7):
        for a in range(2):
            r = 192 + 4 * j + 2 * a
            A(f'ds_read_b64_tr_b16 v[{r}:{r+1}], v1 offset:{j*32+a*16*896}')
    A(f's_lshr_b32 s{T2}, s{sW}, 1\ns_and_b32 s{T3}, s{sW}, 1')
    A(f'v_mov_b32 v7, {OOB:#x}\nv_lshlrev_b32 v1, 5, v0\nv_cndmask_b32 v1, v7, v1, s[{M56}:{M56+1}]')
    A(f's_mul_i32 s{T0}, s{T3}, {224*8}\ns_add_u32 s{T0}, s{T0}, {WS_MOD+2*448*8}\ns_add_u32 s{T1}, s{T0}, {448*8}\ns_add_u32 s{T4}, s{T1}, {448*8}')
    A(f's_cmp_ge_u32 s{sJOB}, 28\ns_cselect_b32 s{sB}, 1, 0\ns_mul_i32 s{T5}, s{sB}, 28\ns_sub_u32 s{T5}, s{sJOB}, s{T5}\ns_lshl_b32 s{T5}, s{T5}, 7\ns_add_u32 s{T5}, s{T5}, {WS_MOD+5*448*8}')
    A('v_and_b32 v5, 7, v0\nv_lshrrev_b32 v6, 5, v0\nv_lshl_add_u32 v5, v5, 1, v6\nv_lshlrev_b32 v2, 3, v5')
    g.srd(SA, sX, 1792)
    A(f'v_lshlrev_b32 v3, 3, v0\nv_cndmask_b32 v3, v7, v3, s[{M56}:{M56+1}]\ns_mul_i32 s{sSPLIT}, s{sW}, 448')
    A(f'buffer_load_dwordx2 v[42:43], v3, s[{SA}:{SA+3}], s{sSPLIT} offen')
    l = g.poll_head('mod2')
    for i, so in enumerate((T0, T1, T4)):
        for h in range(2):
            r = 16 + 8 * i + 4 * h
            A(f'buffer_load_dwordx4 v[{r}:{r+3}], v1, s[{WSR}:{WSR+3}], s{so} offen offset:{16*h} sc1')
    A(f'buffer_load_dwordx2 v[40:41], v2, s[{WSR}:{WSR+3}], s{T5} offen sc1\ns_waitcnt vmcnt(0)')
    g.tagcheck(range(17, 42, 2), 8, 9, M56)
    A(f's_cbranch_vccnz {l}')
    g.stamp(5)
    A(f's_lshl_b32 s{T0}, s{T2}, 4\ns_sub_u32 s{T0}, 16, s{T0}\ns_lshl_b32 s{T1}, s{sB}, 4\ns_sub_u32 s{T1}, 16, s{T1}')
    for i in range(12):
        A(f'v_lshlrev_b32 v{96+i}, s{T0}, v{16+2*i}\nv_and_b32 v{96+i}, 0xffff0000, v{96+i}')
    A(f'v_lshlrev_b32 v112, s{T1}, v40\nv_and_b32 v112, 0xffff0000, v112')
    for i in range(4): A(f'v_add_f32 v{104+i}, 1.0, v{104+i}')
    g.rnd2(104, 105, 8); g.rnd2(106, 107, 9)
    g.unpack(108, 109, 42); g.unpack(110, 111, 43)
    A(f'v_lshlrev_b32 v1, 4, v0\nv_cndmask_b32 v1, v7, v1, s[{M56}:{M56+1}]\ns_mul_i32 s{T0}, s{sW}, 896\ns_add_u32 s{T1}, s{T0}, {WS_H2}\nv_add_u32 v1, s{T1}, v1')
    A(f'v_lshlrev_b32 v113, 4, v0\ns_add_u32 s{T1}, s{T0}, {L_X2}\nv_add_u32 v113, s{T1}, v113\nv_mov_b32 v8, {L_DUMMY}\nv_cndmask_b32 v113, v8, v113, s[{M56}:{M56+1}]')
    A(f's_mul_i32 s{T1}, s{T3}, 56\nv_add_u32 v6, s{T1}, v0')
    g.xaddr(2, 6, 9)
    A(f's_mul_i32 s{T1}, s{T2}, {XS}\ns_add_u32 s{T1}, s{T1}, {L_XB}\nv_add_u32 v2, s{T1}, v2\nv_cndmask_b32 v2, v8, v2, s[{M56}:{M56+1}]')
    g.xfrag_addr(3, 9, L_XB)
    A(f's_lshl_b32 s{T1}, s{sW}, 4\ns_add_u32 s{T1}, s{T1}, {L_ST}\nv_mov_b32 v114, s{T1}\ns_lshl_b32 s{T1}, s{T2}, 5\ns_add_u32 s{T1}, s{T1}, {L_ST}\nv_mov_b32 v115, s{T1}')
    A(f'v_and_b32 v9, 1, v0\nv_lshlrev_b32 v116, 6, v9\nv_bfe_u32 v10, v0, 4, 1\nv_lshl_add_u32 v116, v10, 4, v116\nv_lshrrev_b32 v10, 5, v0\nv_lshl_add_u32 v116, v10, 2, v116')
    A(f's_lshl_b32 s{T1}, s{T3}, 5\ns_lshl_b32 s{T4}, s{T2}, 3\ns_add_u32 s{T1}, s{T1}, s{T4}\ns_add_u32 s{T1}, s{T1}, {L_GB}\nv_add_u32 v116, s{T1}, v116')
    A(f'v_lshrrev_b32 v4, 4, v0\nv_lshlrev_b32 v10, 6, v9\nv_lshl_add_u32 v10, v4, 4, v10\nv_add_u32 v10, {L_GB}, v10\nv_mov_b32 v11, {L_ZERO}\nv_bfe_u32 v12, v0, 1, 3')
    for j in range(7): A(f'v_cmp_eq_u32 vcc, {j}, v12\nv_cndmask_b32 v{120+j}, v11, v10, vcc')
    A(f'v_mul_u32_u24 v117, 1792, v9\nv_lshl_add_u32 v117, v12, 6, v117\nv_lshl_add_u32 v117, v4, 4, v117\nv_cmp_gt_u32 vcc, 7, v12\nv_cndmask_b32 v117, v7, v117, vcc')
    A(f's_mul_i32 s{T5}, s{sJOB}, 3584\ns_mul_i32 s{T1}, s{sW}, 448\ns_add_u32 s{T5}, s{T5}, s{T1}\ns_add_u32 s{T5}, s{T5}, {WS_H3}')
    A(f'v_lshrrev_b32 v10, 3, v0\nv_mul_u32_u24 v118, 3584, v10\nv_and_b32 v10, 7, v0\nv_lshl_add_u32 v118, v10, 3, v118\ns_lshl_b32 s{T1}, s{sJOB}, 6\ns_add_u32 s{T4}, s{T1}, {WS_H3}\nv_add_u32 v118, s{T4}, v118')
    A(f's_add_u32 s{T4}, s{T1}, {L_X2}\nv_lshlrev_b32 v119, 2, v5\nv_add_u32 v119, s{T4}, v119')
    A(f's_lshl_b32 s{T1}, s{sJOB}, 5\nv_lshlrev_b32 v127, 1, v5\nv_add_u32 v127, s{T1}, v127\nv_and_b32 v10, 0x18, v0\nv_cmp_eq_u32 vcc, 0, v10\nv_cndmask_b32 v127, v7, v127, vcc')
    g.srd(SB_, sOUT, 1792)
    for i in range(1, 8): A(f's_mov_b32 s{88+i}, {3584*i}')
    A(f's_mov_b32 s{T0}, {f2u(1/224):#x}\ns_mov_b32 s{T1}, {f2u(1/448):#x}\ns_mov_b32 s{T2}, {f2u(-1.4426950408889634):#x}')
    g.stamp(6)
    A('s_waitcnt lgkmcnt(0)\ns_barrier')
    g.stamp(7)
    l = g.poll_head('h2')
    for i in range(8):
        so = '0' if i == 0 else f's{88+i}'
        A(f'buffer_load_dwordx4 v[{64+4*i}:{67+4*i}], v1, s[{WSR}:{WSR+3}], {so} offen sc1')
    A('s_waitcnt vmcnt(6)\nv_pk_add_f32 v[16:17], v[64:65], v[68:69]\nv_pk_add_f32 v[18:19], v[66:67], v[70:71]')
    for i in range(2, 8):
        A(f's_waitcnt vmcnt({7-i})\nv_pk_add_f32 v[16:17], v[16:17], v[{64+4*i}:{65+4*i}]\nv_pk_add_f32 v[18:19], v[18:19], v[{66+4*i}:{67+4*i}]')
    slow = g.lab('h2slow'); ok = g.lab('h2ok')
    A(f'v_cmp_u_f32 vcc, v16, v17\nv_cmp_u_f32 s[{MT}:{MT+1}], v18, v19\nv_cvt_pk_bf16_f32 v8, v16, v17\nv_cvt_pk_bf16_f32 v9, v18, v19\ns_or_b64 vcc, vcc, s[{MT}:{MT+1}]\ns_cbranch_vccnz {slow}\n{ok}:')
    g.slow_paths.append((slow, ok, l, list(range(64, 96))))
    g.stamp(8)
    g.unpack(16, 17, 8); g.unpack(18, 19, 9)
    A('v_pk_mul_f32 v[16:17], v[16:17], v[96:97]\nv_pk_mul_f32 v[18:19], v[18:19], v[98:99]')
    g.rnd2(16, 17, 8); g.rnd2(18, 19, 9)
    A('v_pk_add_f32 v[16:17], v[16:17], v[108:109]\nv_pk_add_f32 v[18:19], v[18:19], v[110:111]')
    g.rnd2(16, 17, 8); g.rnd2(18, 19, 9)
    A(f'v_readfirstlane_b32 s{T3}, v16\nds_write_b128 v113, v[16:19]')
    for i in range(4): A(f'v_subrev_f32 v{20+i}, s{T3}, v{16+i}')
    A('v_add_f32 v24, v20, v21\nv_mul_f32 v25, v20, v20\nv_add_f32 v24, v24, v22\nv_fmac_f32 v25, v21, v21\nv_add_f32 v24, v24, v23\nv_fmac_f32 v25, v22, v22\nv_fmac_f32 v25, v23, v23')
    A(f'v_cndmask_b32 v24, 0, v24, s[{M56}:{M56+1}]\nv_cndmask_b32 v25, 0, v25, s[{M56}:{M56+1}]')
    g.allred_wave('add', [24, 25], [26, 27])
    A(f'v_mul_f32 v26, s{T0}, v24\nv_fma_f32 v25, -v26, v24, v25\nv_add_f32 v24, s{T3}, v26')
    A('ds_write_b64 v114, v[24:25]\ns_waitcnt lgkmcnt(0)\ns_barrier')
    A('ds_read_b64 v[24:25], v115\nds_read_b64 v[26:27], v115 offset:16\ns_waitcnt lgkmcnt(0)')
    A('v_sub_f32 v28, v24, v26\nv_add_f32 v24, v24, v26\nv_add_f32 v25, v25, v27\nv_mul_f32 v28, v28, v28\nv_mul_f32 v24, 0.5, v24')
    A(f'v_mul_f32 v25, s{T1}, v25\nv_fmac_f32 v25, {f2u(0.25):#x}, v28')
    g.rnd2(24, 25, 8)
    A(f'v_add_f32 v25, {C_EPS:#x}, v25\nv_cvt_pk_bf16_f32 v25, v25, v25\nv_and_b32 v25, 0xffff0000, v25\nv_sqrt_f32 v25, v25')
    for i in range(4): A(f'v_sub_f32 v{16+i}, v{16+i}, v24')
    A('v_cvt_pk_bf16_f32 v25, v25, v25\nv_and_b32 v25, 0xffff0000, v25\nv_rcp_f32 v25, v25')
    g.rnd2(16, 17, 8); g.rnd2(18, 19, 9)
    for i in range(4): A(f'v_mul_f32 v{16+i}, v{16+i}, v25')
    g.rnd2(16, 17, 8); g.rnd2(18, 19, 9)
    A('v_pk_mul_f32 v[16:17], v[16:17], v[104:105]\nv_pk_mul_f32 v[18:19], v[18:19], v[106:107]')
    g.rnd2(16, 17, 8); g.rnd2(18, 19, 9)
    A('v_pk_add_f32 v[16:17], v[16:17], v[100:101]\nv_pk_add_f32 v[18:19], v[18:19], v[102:103]')
    A('v_cvt_pk_bf16_f32 v8, v16, v17\nv_cvt_pk_bf16_f32 v9, v18, v19')
    A('ds_write_b64 v2, v[8:9]\ns_waitcnt lgkmcnt(0)\ns_barrier')
    g.stamp(9)
    for t in range(14): A(f'ds_read_b128 v[{32+4*t}:{35+4*t}], v3 offset:{64*t}')
    for t in range(14):
        A(f's_waitcnt lgkmcnt({13-t})')
        c = '0' if t == 0 else 'v[16:19]'
        A(f'v_mfma_f32_16x16x32_bf16 v[16:19], v[{128+4*t}:{131+4*t}], v[{32+4*t}:{35+4*t}], {c}')
    A('v_permlane32_swap_b32 v16, v18\nv_permlane32_swap_b32 v17, v19')
    g.rnd2(16, 17, 8); g.rnd2(18, 19, 9)
    A(f'v_mul_f32 v20, s{T2}, v16\nv_mul_f32 v21, s{T2}, v17\nv_exp_f32 v20, v20\nv_exp_f32 v21, v21\nv_add_f32 v20, 1.0, v20\nv_add_f32 v21, 1.0, v21\nv_rcp_f32 v20, v20\nv_rcp_f32 v21, v21')
    A('v_mul_f32 v16, v16, v20\nv_mul_f32 v17, v17, v21')
    g.rnd2(16, 17, 8)
    A('v_mul_f32 v16, v16, v18\nv_mul_f32 v17, v17, v19\nv_cvt_pk_bf16_f32 v8, v16, v17')
    A('ds_write_b32 v116, v8\ns_waitcnt lgkmcnt(0)\ns_barrier')
    for j in range(7): A(f'ds_read_b128 v[{32+4*j}:{35+4*j}], v{120+j}')
    A('ds_read_b32 v24, v119')
    for j in range(7):
        A(f's_waitcnt lgkmcnt({7-j})')
        c = '0' if j == 0 else 'v[16:19]'
        A(f'v_mfma_f32_16x16x32_bf16 v[16:19], v[{192+4*j}:{195+4*j}], v[{32+4*j}:{35+4*j}], {c}')
    for r in range(4): A(f'v_min_u32 v{16+r}, -2, v{16+r}')
    A(f'buffer_store_dwordx4 v[16:19], v117, s[{WSR}:{WSR+3}], s{T5} offen sc1')
    g.stamp(10)
    A(f's_cmp_eq_u32 s{sW}, 0\ns_cbranch_scc0 L_fdone')
    for i in range(1, 7): A(f's_mov_b32 s{88+i}, {3584*8*i}')
    l = g.poll_head('h3')
    for i in range(7):
        so = '0' if i == 0 else f's{88+i}'
        A(f'buffer_load_dwordx2 v[{64+2*i}:{65+2*i}], v118, s[{WSR}:{WSR+3}], {so} offen sc1')
    A('s_waitcnt vmcnt(5)\nv_pk_add_f32 v[20:21], v[64:65], v[66:67]')
    for i in range(2, 7): A(f's_waitcnt vmcnt({6-i})\nv_pk_add_f32 v[20:21], v[20:21], v[{64+2*i}:{65+2*i}]')
    slow = g.lab('h3slow'); ok = g.lab('h3ok')
    A(f'v_cmp_u_f32 vcc, v20, v21\ns_cbranch_vccnz {slow}\n{ok}:')
    g.slow_paths.append((slow, ok, l, list(range(64, 78))))
    g.stamp(11)
    A(f'v_permlane32_swap_b32 v20, v21\nv_add_f32 v20, v20, v21\nv_add_f32_dpp v20, v20, v20 row_ror:8 {DPPM}')
    A('v_mov_b32 v21, v20\nv_permlane16_swap_b32 v20, v21\nv_add_f32 v20, v20, v21')
    A('v_cvt_pk_bf16_f32 v20, v20, v20\nv_and_b32 v20, 0xffff0000, v20\nv_mul_f32 v20, v20, v112')
    A('v_cvt_pk_bf16_f32 v20, v20, v20\nv_and_b32 v20, 0xffff0000, v20\ns_waitcnt lgkmcnt(0)\nv_add_f32 v20, v20, v24\nv_cvt_pk_bf16_f32 v20, v20, v20')
    A(f'buffer_store_short v20, v127, s[{SB_}:{SB_+3}], 0 offen')
    g.stamp(12)
    A('s_branch L_end')
    A('L_fdone:')
    A(f's_lshl_b32 s{T0}, s{sJOB}, 2\ns_add_u32 s{T0}, s{T0}, s{sW}\ns_cmp_eq_u32 s{T0}, 1\ns_cbranch_scc0 L_end')
    A(f'v_cmp_eq_u32 vcc, 0, v0\nv_mov_b32 v8, s{sTAG}\nv_cndmask_b32 v9, v7, v0, vcc')
    A(f'buffer_store_dword v8, v9, s[{WSR}:{WSR+3}], 0 offen sc1')
    A('s_branch L_end')
    for slow, ok, loop, regs in g.slow_paths:
        A(f'{slow}:')
        A(f'v_max3_u32 v10, v{regs[0]}, v{regs[1]}, v{regs[1]}')
        for i in range(2, len(regs), 2): A(f'v_max3_u32 v10, v10, v{regs[i]}, v{regs[i+1]}')
        A(f'v_cmp_eq_u32 vcc, -1, v10\ns_cbranch_vccnz {loop}\ns_branch {ok}')

    A('L_vwave:')
    A(f'v_mov_b32 v7, {OOB:#x}')
    for r in range(4): A(f'v_mov_b32 v{12+r}, -1')
    role_dispatch(g, 'L_mjob', 'L_qjob', 'L_oload', 'L_fload', 'L_vstream')

    A('L_mjob:\ns_setprio 3')
    g.srd(SB_, sC, 1792); g.srd(SA, sWM, 448 * 5376)
    A(f's_lshl_b32 s{T0}, s{sW}, 6\nv_add_u32 v4, s{T0}, v0\nv_lshlrev_b32 v2, 3, v4')
    A(f'buffer_load_dwordx2 v[16:17], v2, s[{SB_}:{SB_+3}], 0 offen')
    A(f's_lshl_b32 s{T0}, s{sJOB}, 7')
    g.slab64_dma(SA, 5376, 14, 1, 2)
    A(f'v_lshlrev_b32 v2, 4, v0\nv_cmp_gt_u32 vcc, 32, v0\nv_cndmask_b32 v2, v7, v2, vcc')
    A(f's_lshl_b32 s{T0}, s{sJOB}, 11\ns_lshl_b32 s{T1}, s{sW}, 9\ns_add_u32 s{T0}, s{T0}, s{T1}\ns_add_u32 s{T0}, s{T0}, {WS_H2}\ns_cmp_lt_u32 s{sJOB}, 14\ns_cselect_b32 s{T0}, s{T0}, {OOB:#x}')
    A(f'buffer_store_dwordx4 v[12:15], v2, s[{WSR}:{WSR+3}], s{T0} offen sc1')
    g.stamp(1)
    A(f'v_cmp_le_u32 vcc, 112, v4\nv_subrev_u32 v5, 112, v4\nv_cndmask_b32 v5, v4, v5, vcc\nv_mov_b32 v6, {L_XB}\nv_mov_b32 v8, {L_XB+XS}\nv_cndmask_b32 v6, v6, v8, vcc')
    g.xaddr(2, 5, 8)
    A(f'v_add_u32 v2, v2, v6\nv_mov_b32 v8, {L_DUMMY}\nv_cmp_gt_u32 vcc, 224, v4\nv_cndmask_b32 v2, v8, v2, vcc')
    A(f's_mov_b32 s{T2}, {f2u(-1.4426950408889634):#x}\ns_waitcnt vmcnt(15)')
    g.unpack(20, 21, 16); g.unpack(22, 23, 17)
    for i in range(4): A(f'v_mul_f32 v{24+i}, s{T2}, v{20+i}')
    for i in range(4): A(f'v_exp_f32 v{24+i}, v{24+i}')
    for i in range(4): A(f'v_add_f32 v{24+i}, 1.0, v{24+i}')
    for i in range(4): A(f'v_rcp_f32 v{24+i}, v{24+i}')
    for i in range(4): A(f'v_mul_f32 v{20+i}, v{20+i}, v{24+i}')
    A('v_cvt_pk_bf16_f32 v16, v20, v21\nv_cvt_pk_bf16_f32 v17, v22, v23\nds_write_b64 v2, v[16:17]')
    g.slab64_traddr(1, 2, 3)
    g.xfrag_addr(3, 2, L_XB)
    mk_tag(g)
    A('s_waitcnt vmcnt(0)')
    g.stamp(2)
    g.subbar(1, 16)
    for t in range(14):
        A(f'ds_read_b128 v[{32+4*t}:{35+4*t}], v3 offset:{64*t}')
        for a in range(2): A(f'ds_read_b64_tr_b16 v[{128+4*t+2*a}:{129+4*t+2*a}], v1 offset:{t*4096+a*2048}')
        if t >= 3:
            u = t - 3; c = '0' if u == 0 else 'v[16:19]'
            A(f's_waitcnt lgkmcnt(9)\nv_mfma_f32_16x16x32_bf16 v[16:19], v[{32+4*u}:{35+4*u}], v[{128+4*u}:{131+4*u}], {c}')
    for u in (11, 12, 13):
        A(f's_waitcnt lgkmcnt({3*(13-u)})\nv_mfma_f32_16x16x32_bf16 v[16:19], v[{32+4*u}:{35+4*u}], v[{128+4*u}:{131+4*u}], v[16:19]')
    A(f'v_lshlrev_b32 v2, 3, v0\nv_cmp_gt_u32 vcc, 16, v0\nv_cndmask_b32 v2, v7, v2, vcc\nv_mov_b32 v21, s{sTAG}')
    A(f's_lshl_b32 s{T0}, s{sJOB}, 9\ns_lshl_b32 s{T1}, s{sW}, 7\ns_add_u32 s{T0}, s{T0}, s{T1}\ns_add_u32 s{T0}, s{T0}, {WS_MOD}')
    A(f'v_cvt_pk_bf16_f32 v20, v16, v17\nbuffer_store_dwordx2 v[20:21], v2, s[{WSR}:{WSR+3}], s{T0} offen sc1')
    g.stamp(3)
    A('s_setprio 0\ns_branch L_vstream')

    A('L_qjob:\ns_setprio 3')
    g.srd(SB_, sX, 1792); g.srd(SA, sWQ, 448 * 8192)
    A(f'v_lshlrev_b32 v4, 4, v0\nv_cndmask_b32 v4, v7, v4, s[{M56}:{M56+1}]\nv_lshlrev_b32 v2, 2, v0\nv_cndmask_b32 v2, v7, v2, s[{M56}:{M56+1}]\ns_mul_i32 s{T0}, s{sW}, 224')
    A(f'buffer_load_dwordx4 v[16:19], v4, s[{SB_}:{SB_+3}], 0 offen\nbuffer_load_dwordx4 v[20:23], v4, s[{SB_}:{SB_+3}], 0 offen offset:896')
    A(f'buffer_load_dword v24, v2, s[{SB_}:{SB_+3}], s{T0} offen\nbuffer_load_dword v25, v2, s[{SB_}:{SB_+3}], s{T0} offen offset:896')
    A(f's_lshl_b32 s{T0}, s{sJOB}, 7')
    g.slab64_dma(SA, 8192, 14, 1, 2)
    A(f'v_lshlrev_b32 v2, 4, v0\ns_lshl_b32 s{T0}, s{sJOB}, 12\ns_lshl_b32 s{T1}, s{sW}, 10\ns_add_u32 s{T0}, s{T0}, s{T1}\ns_add_u32 s{T0}, s{T0}, {WS_H1}')
    A(f'buffer_store_dwordx4 v[12:15], v2, s[{WSR}:{WSR+3}], s{T0} offen sc1')
    g.stamp(1)
    A(f's_mov_b32 s{T1}, {f2u(1/448):#x}\ns_waitcnt vmcnt(15)')
    for i in range(8): g.unpack(32 + 2 * i, 33 + 2 * i, 16 + i)
    for b in range(2):
        A(f'v_add_f32 v{48+b}, v{32+8*b}, v{33+8*b}')
        for i in range(2, 8): A(f'v_add_f32 v{48+b}, v{48+b}, v{32+8*b+i}')
    g.allred_wave('add', [48, 49], [52, 53])
    for b in range(2):
        A(f'v_mul_f32 v{48+b}, s{T1}, v{48+b}')
        for i in range(8): A(f'v_sub_f32 v{32+8*b+i}, v{32+8*b+i}, v{48+b}')
        A(f'v_mul_f32 v{50+b}, v{32+8*b}, v{32+8*b}')
        for i in range(1, 8): A(f'v_fmac_f32 v{50+b}, v{32+8*b+i}, v{32+8*b+i}')
        A(f'v_cndmask_b32 v{50+b}, 0, v{50+b}, s[{M56}:{M56+1}]')
    g.allred_wave('add', [50, 51], [52, 53])
    A(f'v_mul_f32 v50, s{T1}, v50\nv_mul_f32 v51, s{T1}, v51')
    g.rnd2(48, 49, 52); g.rnd2(50, 51, 52)
    A(f'v_add_f32 v50, {C_EPS:#x}, v50\nv_add_f32 v51, {C_EPS:#x}, v51')
    g.rnd2(50, 51, 52)
    A('v_sqrt_f32 v50, v50\nv_sqrt_f32 v51, v51')
    g.rnd2(50, 51, 52)
    A('v_rcp_f32 v50, v50\nv_rcp_f32 v51, v51')
    g.unpack(100, 101, 24); g.unpack(102, 103, 25)
    for i in range(4): A(f'v_sub_f32 v{100+i}, v{100+i}, v{48+i//2}')
    g.rnd2(100, 101, 52); g.rnd2(102, 103, 52)
    for i in range(4): A(f'v_mul_f32 v{100+i}, v{100+i}, v{50+i//2}')
    g.rnd2(100, 101, 52); g.rnd2(102, 103, 52)
    A(f's_mul_i32 s{T0}, s{sW}, 56\nv_add_u32 v6, s{T0}, v0\nv_lshrrev_b32 v8, 1, v6')
    g.xaddr(5, 8, 9)
    A(f'v_and_b32 v6, 1, v6\nv_lshl_add_u32 v5, v6, 2, v5\nv_add_u32 v5, {L_XB}, v5\nv_add_u32 v6, {XS}, v5\nv_mov_b32 v8, {L_DUMMY}')
    A(f'v_cndmask_b32 v5, v8, v5, s[{M56}:{M56+1}]\nv_cndmask_b32 v6, v8, v6, s[{M56}:{M56+1}]')
    g.slab64_traddr(1, 2, 3)
    g.xfrag_addr(3, 2, L_XB)
    mk_tag(g)
    A('s_waitcnt vmcnt(0)')
    g.stamp(2)
    g.subbar(1, 16)
    for t in range(14):
        for a in range(2): A(f'ds_read_b64_tr_b16 v[{128+4*t+2*a}:{129+4*t+2*a}], v1 offset:{t*4096+a*2048}')
        if t % 4 == 3: A('s_waitcnt lgkmcnt(0)')
    A(f'v_and_b32 v8, 15, v0\nv_lshlrev_b32 v2, 14, v8\nv_lshrrev_b32 v9, 4, v0\nv_lshl_add_u32 v2, v9, 4, v2\nv_cmp_gt_u32 vcc, 2, v8\nv_cndmask_b32 v2, v7, v2, vcc')
    A(f's_lshl_b32 s{T5}, s{sJOB}, 8\ns_lshl_b32 s{T1}, s{sW}, 6\ns_add_u32 s{T5}, s{T5}, s{T1}\ns_add_u32 s{T5}, s{T5}, {WS_Q}')
    A(f's_mul_i32 s{T0}, s{sW}, 896\ns_add_u32 s{T0}, s{T0}, {WS_MOD}')
    l = g.poll_head('mod')
    A(f'buffer_load_dwordx4 v[16:19], v4, s[{WSR}:{WSR+3}], s{T0} offen sc1\nbuffer_load_dwordx4 v[20:23], v4, s[{WSR}:{WSR+3}], s{T0} offen offset:3584 sc1\ns_waitcnt vmcnt(0)')
    g.tagcheck((17, 19, 21, 23), 8, 9, M56)
    A(f's_cbranch_vccnz {l}')
    g.stamp(3)
    g.unpack(24, 26, 16); g.unpack(25, 27, 18)
    g.unpack(28, 30, 20); g.unpack(29, 31, 22)
    for i in range(4): A(f'v_add_f32 v{28+i}, 1.0, v{28+i}')
    g.rnd2(28, 29, 8); g.rnd2(30, 31, 9)
    for i in range(4): A(f'v_mul_f32 v{28+i}, v{28+i}, v{100+i}')
    g.rnd2(28, 29, 8); g.rnd2(30, 31, 9)
    for i in range(4): A(f'v_add_f32 v{28+i}, v{28+i}, v{24+i}')
    A('v_cvt_pk_bf16_f32 v8, v28, v29\nv_cvt_pk_bf16_f32 v9, v30, v31\nds_write_b32 v5, v8\nds_write_b32 v6, v9')
    g.subbar(2, 16)
    for t in range(14): A(f'ds_read_b128 v[{32+4*t}:{35+4*t}], v3 offset:{64*t}')
    for t in range(14):
        c = '0' if t == 0 else 'v[16:19]'
        A(f's_waitcnt lgkmcnt({13-t})\nv_mfma_f32_16x16x32_bf16 v[16:19], v[{128+4*t}:{131+4*t}], v[{32+4*t}:{35+4*t}], {c}')
    A(f'v_mov_b32 v21, s{sTAG}\nv_mov_b32 v23, s{sTAG}\nv_cvt_pk_bf16_f32 v20, v16, v17\nv_cvt_pk_bf16_f32 v22, v18, v19')
    A(f'buffer_store_dwordx4 v[20:23], v2, s[{WSR}:{WSR+3}], s{T5} offen sc1')
    g.stamp(4)
    A('s_setprio 0\ns_branch L_vstream')

    A('L_oload:')
    g.srd(SA, sWO, 4096 * 896)
    A(f's_mul_i32 s{T0}, s{sHKV}, {512*896}\ns_lshl_b32 s{T1}, s{sJOB}, 7\ns_add_u32 s{T0}, s{T0}, s{T1}')
    g.slab64_dma(SA, 896, 16, 1, 2)
    A('s_branch L_vstream')
    A('L_fload:')
    g.srd(SA, sWG, 448 * 3584); g.srd(SB_, sWU, 448 * 3584); g.srd(SC_, sWD, 1792 * 896)
    A(f'v_lshlrev_b32 v3, 4, v0\nv_cndmask_b32 v2, v7, v3, s[{M56}:{M56+1}]\ns_mul_i32 s{T0}, s{sJOB}, 3584\ns_mul_i32 s{T1}, s{sW}, 896\ns_add_u32 s{T0}, s{T0}, s{T1}\ns_add_u32 s{T0}, s{T0}, {WS_H3}')
    A(f'buffer_store_dwordx4 v[12:15], v2, s[{WSR}:{WSR+3}], s{T0} offen sc1')
    A('v_lshrrev_b32 v1, 2, v0\nv_mul_u32_u24 v1, 3584, v1\nv_bfe_u32 v2, v0, 4, 1\nv_xor_b32 v2, v2, v0\nv_and_b32 v2, 3, v2\nv_lshl_add_u32 v1, v2, 4, v1\nv_xor_b32 v2, 32, v1')
    for srd, vo, lb in ((SA, 1, 0), (SB_, 2, 28672)):
        A(f's_lshl_b32 s{T0}, s{sJOB}, 6\ns_mul_i32 s{T1}, s{sW}, {7*16*3584}\ns_add_u32 s{T0}, s{T0}, s{T1}\ns_mul_i32 s{T1}, s{sW}, 7168\ns_add_u32 s{T1}, s{T1}, {lb}')
        g.dma(vo, srd, 7, T0, 16 * 3584, T1)
    A(f's_mul_i32 s{T0}, s{sJOB}, 28672\ns_mul_i32 s{T1}, s{sW}, 7168\ns_add_u32 s{T0}, s{T0}, s{T1}\ns_add_u32 s{T1}, s{T1}, {2*28672}')
    g.dma(3, SC_, 7, T0, 1024, T1)

    A('L_vstream:')
    g.srd(KV, sV, 0x10000000)
    A('v_lshrrev_b32 v4, 4, v0\nv_and_b32 v5, 15, v0\nv_lshlrev_b32 v1, 9, v4\nv_lshl_add_u32 v1, v5, 4, v1')
    g.stamp(5)
    g.kv_loads(1)
    g.stamp(6)
    mk_masks(g, 8, 2, 3)
    A(f'v_bfe_u32 v6, v0, 3, 1\nv_lshl_add_u32 v3, v6, 2, v4\nv_lshlrev_b32 v3, 6, v3\ns_lshl_b32 s{T0}, s{sW}, 9\ns_add_u32 s{T0}, s{T0}, {L_P}\nv_add_u32 v3, s{T0}, v3')
    A(f'v_lshlrev_b32 v2, 4, v6\nv_add_u32 v2, {L_M}, v2\ns_lshl_b32 s{T0}, s{sW}, 2\nv_add_u32 v1, s{T0}, v2')
    A(f's_mov_b32 s{T1}, {C_SM:#x}')
    A('s_waitcnt vmcnt(32) lgkmcnt(0)\ns_barrier')
    g.stamp(7)
    A('ds_read_b128 v[16:19], v2\nds_read_b32 v20, v1')
    for i in range(4): A(f'ds_read_b128 v[{96+4*i}:{99+4*i}], v3 offset:{16*i}')
    A(f'v_lshrrev_b32 v6, 1, v4\nv_lshlrev_b32 v2, 10, v6\nv_lshl_add_u32 v2, v5, 5, v2\nv_and_b32 v6, 1, v4\nv_lshl_add_u32 v2, v6, 4, v2\ns_lshl_b32 s{T0}, s{sW}, 11\ns_add_u32 s{T0}, s{T0}, {L_RED}\nv_add_u32 v2, s{T0}, v2')
    A(f's_lshl_b32 s{T0}, s{sW}, 10\ns_add_u32 s{T0}, s{T0}, {L_RED}\nv_lshlrev_b32 v3, 4, v0\nv_add_u32 v3, s{T0}, v3\nv_lshlrev_b32 v1, 3, v0')
    A(f's_lshl_b32 s{T0}, s{sHKV}, 15\ns_lshl_b32 s{T2}, s{sB}, 14\ns_add_u32 s{T0}, s{T0}, s{T2}\ns_lshl_b32 s{T2}, s{sSPLIT}, 10\ns_add_u32 s{T0}, s{T0}, s{T2}\ns_lshl_b32 s{T2}, s{sW}, 9\ns_add_u32 s{T0}, s{T0}, s{T2}\ns_add_u32 s{T0}, s{T0}, {WS_H1}')
    A('s_waitcnt lgkmcnt(4)\nv_max3_f32 v16, v16, v17, v18\nv_max_f32 v16, v16, v19\nv_sub_f32 v20, v20, v16')
    A(f'v_mul_f32 v20, s{T1}, v20\nv_exp_f32 v20, v20\ns_waitcnt lgkmcnt(0)')
    for t in range(16):
        A(f'v_mul_f32 v{96+t}, v{96+t}, v20\nv_cvt_pk_bf16_f32 v{96+t}, v{96+t}, v{96+t}')
        for r in range(4): A(f'v_and_b32 v{32+4*t+r}, v{96+t}, v{8+r}')
    g.stamp(8)
    for t in range(16):
        for hf in range(2):
            a = 24 + 4 * hf; r = 128 + 8 * t + 4 * hf
            c = '0' if t == 0 else f'v[{a}:{a+3}]'
            A(f's_waitcnt vmcnt({31-2*t-hf})\nv_mfma_f32_16x16x32_bf16 v[{a}:{a+3}], v[{32+4*t}:{35+4*t}], v[{r}:{r+3}], {c}')
    g.stamp(9)
    A('ds_write_b128 v2, v[24:27]\nds_write_b128 v2, v[28:31] offset:512\ns_waitcnt lgkmcnt(0)\ns_barrier')
    A(f's_cmp_ge_u32 s{sW}, 2\ns_cbranch_scc1 L_end')
    for u in range(4): A(f'ds_read_b128 v[{16+4*u}:{19+4*u}], v3 offset:{2048*u}')
    A('s_waitcnt lgkmcnt(2)\nv_pk_add_f32 v[16:17], v[16:17], v[20:21]\nv_pk_add_f32 v[18:19], v[18:19], v[22:23]')
    A('s_waitcnt lgkmcnt(0)\nv_pk_add_f32 v[24:25], v[24:25], v[28:29]\nv_pk_add_f32 v[26:27], v[26:27], v[30:31]')
    A('v_pk_add_f32 v[16:17], v[16:17], v[24:25]\nv_pk_add_f32 v[18:19], v[18:19], v[26:27]')
    A('v_cvt_pk_bf16_f32 v16, v16, v17\nv_cvt_pk_bf16_f32 v17, v18, v19\nv_min_u32 v16, -2, v16\nv_min_u32 v17, -2, v17')
    A(f'buffer_store_dwordx2 v[16:17], v1, s[{WSR}:{WSR+3}], s{T0} offen sc1')
    g.stamp(10)

    A('L_end:')
    if diag:
        g.stamp(15)
        A(f's_lshl_b32 s{T0}, s2, 3\ns_add_u32 s{T0}, s{T0}, s{sWAVE}\ns_lshl_b32 s{T0}, s{T0}, 6\ns_add_u32 s{T0}, s{T0}, {WS_STAMP}')
        A('s_mov_b64 exec, 1\nv_mov_b32 v1, 0')
        for q in range(4):
            for i in range(4): A(f'v_mov_b32 v{4+4*q+i}, s{ST0+4*q+i}')
            A(f'buffer_store_dwordx4 v[{4+4*q}:{7+4*q}], v1, s[{WSR}:{WSR+3}], s{T0} offen offset:{16*q}')
    A('L_exit:\ns_endpgm')
    body = fix_hazards(g.L)
    txt = HEADER + f'; @launch grid=(256,1,1) block=(512,1,1) lds={LDS_BYTES}\n'
    txt += f'.amdgcn_target "amdgcn-amd-amdhsa--gfx950"\n.text\n.globl {KNAME}\n.p2align 8\n.type {KNAME},@function\n{KNAME}:\n'
    txt += '\n'.join(body) + '\n'
    txt += f'''.section .rodata,"a"
.p2align 6
.amdhsa_kernel {KNAME}
  .amdhsa_next_free_vgpr 256
  .amdhsa_next_free_sgpr 102
  .amdhsa_accum_offset 256
  .amdhsa_group_segment_fixed_size 0
  .amdhsa_kernarg_size 112
  .amdhsa_user_sgpr_count 2
  .amdhsa_user_sgpr_kernarg_segment_ptr 1
  .amdhsa_system_sgpr_workgroup_id_x 1
  .amdhsa_float_denorm_mode_32 3
.end_amdhsa_kernel
'''
    return txt

def mk_masks(g, m, t, u):
    A = g.A
    A(f'v_and_b32 v{t}, 1, v0\nv_lshlrev_b32 v{t}, 4, v{t}\nv_mov_b32 v{u}, 0xffff\nv_lshlrev_b32 v{t}, v{t}, v{u}\nv_bfe_u32 v{u}, v0, 1, 2')
    for r in range(4): A(f'v_cmp_eq_u32 vcc, {r}, v{u}\nv_cndmask_b32 v{m+r}, 0, v{t}, vcc')

if __name__ == '__main__':
    out = sys.argv[1] if len(sys.argv) > 1 else 'adaLN_cond__sliding_block_cached__swiglu_ffn__decode.s'
    diag = len(sys.argv) > 2 and sys.argv[2] == 'diag'
    open(out, 'w').write(build(diag))
```
